```python
import torch

def _softmax(x, axis=-1):
    return torch.softmax(x, dim=axis)
def _gelu(x):
    return torch.nn.functional.gelu(x, approximate="tanh")
def _silu(x):
    return torch.nn.functional.silu(x)
def _sigmoid(x):
    return torch.sigmoid(x)
def _layernorm(x, axis=-1, eps=1e-5):
    m = x.mean(dim=axis, keepdim=True)
    v = x.var(dim=axis, keepdim=True, unbiased=False)
    return (x - m) / torch.sqrt(v + eps)
def _scatter_add(tgt, idx, src, axis=0):
    return tgt.clone().index_add_(axis, idx, src)
def _segment_sum(src, seg, n):
    out = torch.zeros((n,) + src.shape[1:], dtype=src.dtype)
    return out.index_add_(0, seg, src)
def _pad(x, pw):
    flat = tuple(v for pair in reversed(pw) for v in pair)
    return torch.nn.functional.pad(x, flat)

kernel_name = 'standalone__window_attn_swin_v2__vision'

def setup_inputs():

    _w = (lambda a: (lambda t: t.to(torch.bfloat16) if t.is_floating_point() else t)(torch.as_tensor(a)))
    win = 8
    H = W = (224 // win) * win
    C = 96
    nh = 4
    shift = win // 2
    coords = torch.stack(torch.meshgrid(torch.arange(win), torch.arange(win), indexing="ij"), -1).reshape(-1, 2)
    rel = coords[:, None, :] - coords[None, :, :]
    rel_idx = ((rel[..., 0] + win - 1) * (2 * win - 1) + (rel[..., 1] + win - 1)).to(torch.int64)
    tab = torch.stack(torch.meshgrid(torch.arange(1 - win, win), torch.arange(1 - win, win), indexing="ij"), -1).reshape(-1, 2).to(float)
    tab = (lambda _x: torch.sign(torch.as_tensor(_x)))(tab) * (lambda _x: torch.log1p(torch.as_tensor(_x)))(torch.abs(tab))
    img = torch.zeros((H, W), dtype=torch.int64)
    cnt = 0
    for hs in (slice(0, H - win), slice(H - win, H - shift), slice(H - shift, H)):
        for ws in (slice(0, W - win), slice(W - win, W - shift), slice(W - shift, W)):
            img[hs, ws] = cnt; cnt += 1
    mw = img.reshape(H // win, win, W // win, win).permute(0, 2, 1, 3).reshape(-1, win * win)
    mask = (mw[:, :, None] != mw[:, None, :]).to(float) * (-100.0)
    return {
        "x": _w((lambda *s: torch.randn(*s, dtype=torch.bfloat16) * 0.05)(1, H, W, C)),
        "wqkv": _w((lambda *s: torch.randn(*s, dtype=torch.bfloat16) * 1.6)(C, 3 * C)),
        "wo": _w((lambda *s: torch.randn(*s, dtype=torch.bfloat16) * 0.05)(C, C)),
        "logit_scale": _w((lambda *s: torch.randn(*s, dtype=torch.bfloat16) * 1.6)(nh)),
        "cpb_w1": _w((lambda *s: torch.randn(*s, dtype=torch.bfloat16) * 0.8)(2, 4 * nh)),
        "cpb_w2": _w((lambda *s: torch.randn(*s, dtype=torch.bfloat16) * 0.8)(4 * nh, nh)),
        "rel_coords": _w(tab),
        "rel_idx": _w(rel_idx),
        "attn_mask": _w(mask),
    }

def reference(x, wqkv, wo, logit_scale, cpb_w1, cpb_w2, rel_coords, rel_idx, attn_mask):
    B, H, W, C = x.shape
    win = 8
    nh = 4
    hd = C // nh
    shift = win // 2
    ww = win * win
    nH, nW = H // win, W // win
    xs = torch.roll(x, (-shift, -shift), (1, 2))
    xw = (lambda x, *d: x.permute(*d))(xs.reshape(B, nH, win, nW, win, C), 0, 1, 3, 2, 4, 5).reshape(B * nH * nW, ww, C)
    qkv = (lambda x, *d: x.permute(*d))((xw @ wqkv).reshape(B * nH * nW, ww, 3, nh, hd), 2, 0, 3, 1, 4)
    q, k, v = qkv[0], qkv[1], qkv[2]
    qn = q * (torch.einsum("bhqd,bhqd->bhq", q, q)[..., None] + 1e-12) ** -0.5
    kn = k * (torch.einsum("bhkd,bhkd->bhk", k, k)[..., None] + 1e-12) ** -0.5
    logits = torch.einsum("bhqd,bhkd->bhqk", qn, kn)
    tau = torch.exp(torch.clip(logit_scale, -100.0, 4.6052))
    logits = logits * tau[None, :, None, None]
    hcpb = rel_coords @ cpb_w1
    hcpb = torch.where(hcpb > 0, hcpb, hcpb * 0)
    bias_tab = 16.0 * _sigmoid(hcpb @ cpb_w2)
    bias = (lambda x, *d: x.permute(*d))(bias_tab[rel_idx], 2, 0, 1)
    logits = logits.reshape(B, nH * nW, nh, ww, ww) + bias[None, None, :, :, :] + attn_mask[None, :, None, :, :]
    p = _softmax(logits.reshape(B * nH * nW, nh, ww, ww), axis=-1)
    o = (lambda x, *d: x.permute(*d))(torch.einsum("bhqk,bhkd->bhqd", p, v), 0, 2, 1, 3).reshape(B * nH * nW, ww, C) @ wo
    o = (lambda x, *d: x.permute(*d))(o.reshape(B, nH, nW, win, win, C), 0, 1, 3, 2, 4, 5).reshape(B, H, W, C)
    o = torch.roll(o, (shift, shift), (1, 2))
    return _layernorm(o, axis=-1)
```

```python
import re

TRANS = ("v_exp_f32", "v_log_f32", "v_rcp_f32", "v_rsq_f32", "v_sqrt_f32", "v_sin_f32", "v_cos_f32")


def regs_of(tok):
    tok = tok.strip()
    tok = tok.lstrip("-")
    if tok.startswith("abs(") and tok.endswith(")"):
        tok = tok[4:-1]
    if tok.startswith("|") and tok.endswith("|"):
        tok = tok[1:-1]
    m = re.fullmatch(r"([vsa])(\d+)", tok)
    if m:
        return [(m.group(1), int(m.group(2)))]
    m = re.fullmatch(r"([vsa])\[(\d+):(\d+)\]", tok)
    if m:
        return [(m.group(1), i) for i in range(int(m.group(2)), int(m.group(3)) + 1)]
    if tok == "vcc":
        return [("s", 106), ("s", 107)]
    if tok == "exec":
        return [("s", 126), ("s", 127)]
    if tok == "m0":
        return [("s", 124)]
    return []


class Inst:
    __slots__ = ("text", "op", "dst", "src", "kind", "passes", "srcC", "comment")

    def __init__(self, text):
        self.text = text
        body = text.split(";")[0].strip()
        parts = body.split(None, 1)
        self.op = parts[0]
        ops = []
        if len(parts) > 1:
            ops = [o.strip() for o in re.split(r",(?![^\[]*\])", parts[1])]
            newops = []
            for o in ops:
                newops.append(o.split()[0] if o else o)
            ops = newops
        op = self.op
        self.dst, self.src, self.srcC = [], [], []
        self.passes = 0
        R = lambda lst: [r for o in lst for r in regs_of(o)]
        if op.startswith("v_mfma"):
            self.kind = "mfma"
            self.passes = 8 if "32x32x16" in op else 4
            self.dst = R(ops[:1])
            self.src = R(ops[1:3])
            self.srcC = R(ops[3:4])
        elif op.startswith("v_"):
            base = re.sub(r"_(e32|e64|dpp|sdwa)$", "", op)
            self.kind = "trans" if base in TRANS else "valu"
            if base.startswith("v_permlane") and "swap" in base:
                self.kind = "permlane"
                self.dst = R(ops[:2])
                self.src = R(ops[:2])
            elif base.startswith("v_cmp"):
                self.dst = R(ops[:1])
                self.src = R(ops[1:])
            elif base in ("v_readfirstlane_b32", "v_readlane_b32"):
                self.kind = "readlane"
                self.dst = R(ops[:1])
                self.src = R(ops[1:])
            elif base in ("v_add_co_u32", "v_sub_co_u32", "v_addc_co_u32"):
                self.dst = R(ops[:2])
                self.src = R(ops[2:])
            else:
                self.dst = R(ops[:1])
                self.src = R(ops[1:])
                if base in ("v_fmac_f32", "v_dot2c_f32_bf16") or "d16" in base:
                    self.src += self.dst
                if base == "v_cndmask_b32" and len(ops) == 3:
                    self.src += regs_of("vcc")
        elif op.startswith("ds_read") or op.startswith("ds_bpermute") or op.startswith("ds_swizzle"):
            self.kind = "dsread"
            self.dst = R(ops[:1])
            self.src = R(ops[1:])
        elif op.startswith("ds_write"):
            self.kind = "dswrite"
            self.src = R(ops)
        elif op.startswith("buffer_load") or op.startswith("global_load"):
            if re.search(r"\blds\b", body):
                self.kind = "dma"
                self.src = R(ops) + regs_of("m0")
            else:
                self.kind = "vload"
                self.dst = R(ops[:1])
                self.src = R(ops[1:])
        elif op.startswith("buffer_store") or op.startswith("global_store"):
            self.kind = "vstore"
            self.src = R(ops)
        elif op in ("s_waitcnt", "s_barrier", "s_nop", "s_setprio", "s_endpgm", "s_branch", "s_sleep") or op.startswith("s_cbranch"):
            self.kind = "ctl"
        elif op.startswith("s_load") or op == "s_memtime" or op == "s_memrealtime":
            self.kind = "smem"
            self.dst = R(ops[:1])
            self.src = R(ops[1:])
        elif op.startswith("s_cmp"):
            self.kind = "salu"
            self.src = R(ops)
        elif op.startswith("s_"):
            self.kind = "salu"
            self.dst = R(ops[:1])
            self.src = R(ops[1:])
            if "saveexec" in op:
                self.dst += regs_of("exec")
        else:
            raise ValueError("unknown op: " + text)


class State:
    def __init__(self):
        self.t = 0
        self.last_w = {}
        self.mfma_c_read = {}
        self.store_data = {}
        self.lds_q = []
        self.vm_q = []
        self.smem = set()

    def copy(self):
        s = State()
        s.t = self.t
        s.last_w = dict(self.last_w)
        s.mfma_c_read = dict(self.mfma_c_read)
        s.store_data = dict(self.store_data)
        s.lds_q = [set(x) for x in self.lds_q]
        s.vm_q = [set(x) for x in self.vm_q]
        s.smem = set(self.smem)
        s.mfma_D = dict(getattr(self, "mfma_D", {}))
        return s


class Emitter:
    def __init__(self, mfma_gap_credit=False):
        self.lines = []
        self.st = State()
        self.nops_inserted = 0
        self.stats = {}
        self.auto = True

    def raw(self, text):
        self.lines.append(text)

    def label(self, name):
        self.lines.append(name + ":")

    def comment(self, c):
        self.lines.append("    ; " + c)

    def _need(self, ins):
        st = self.st
        need = 0

        def req(tprod, n):
            nonlocal need
            have = st.t - tprod - 1
            if n - have > need:
                need = n - have

        VAL = ("valu", "trans", "permlane", "readlane")
        for r in ins.src + ins.srcC:
            w = st.last_w.get(r)
            if not w:
                continue
            tp, kp, pp = w
            if kp == "mfma":
                if ins.kind == "mfma":
                    if r in ins.srcC:
                        if not (set(ins.srcC) == set(ins.dst_prev(r, st)) and pp == ins.passes):
                            req(tp, {4: 6, 8: 10}[pp])
                    else:
                        req(tp, {4: 8, 8: 12}[pp])
                else:
                    req(tp, {4: 8, 8: 12}[pp])
            elif kp in VAL:
                if ins.kind == "mfma":
                    req(tp, 2)
                if ins.kind == "permlane" and r[0] == "v":
                    req(tp, 2)
                if ins.kind == "readlane" and r[0] == "v":
                    req(tp, 1)
                if kp == "trans" and ins.kind in ("valu", "permlane", "readlane", "dswrite", "vstore"):
                    req(tp, 1)
                if r[0] == "s":
                    if ins.kind in VAL:
                        req(tp, 2)
                    if ins.kind in ("vload", "vstore", "dma"):
                        req(tp, 5)
                    if ins.kind in ("salu", "smem"):
                        req(tp, 4)
                if "_dpp" in ins.op or "dpp" in ins.text:
                    req(tp, 2)
            elif kp == "salu":
                if r == ("s", 124) and ins.kind == "dma":
                    req(tp, 1)
        for r in ins.dst:
            w = st.last_w.get(r)
            if w and w[1] == "mfma":
                tp, kp, pp = w
                if ins.kind == "mfma":
                    if not (set(ins.srcC) == set(ins.dst)):
                        req(tp, {4: 6, 8: 10}[pp])
                else:
                    req(tp, {4: 8, 8: 12}[pp])
            c = st.mfma_c_read.get(r)
            if c and ins.kind in VAL:
                req(c[0], {4: 3, 8: 7}[c[1]])
            sd = st.store_data.get(r)
            if sd is not None and ins.kind in VAL + ("mfma", "dsread", "vload"):
                req(sd, 2)
        return need

    def _waits(self, ins):
        st = self.st
        regs = set(ins.src) | set(ins.srcC) | set(ins.dst)
        lg = None
        for i, q in enumerate(st.lds_q):
            if q & regs:
                lg = len(st.lds_q) - 1 - i
        vm = None
        for i, q in enumerate(st.vm_q):
            if q & regs:
                if ins.kind == "vload" and "d16" in ins.op and not (q & (set(ins.src) - set(ins.dst))):
                    continue
                vm = len(st.vm_q) - 1 - i
        sm = bool(st.smem & regs)
        return lg, vm, sm

    def _apply_wait(self, lg=None, vm=None):
        st = self.st
        if lg is not None:
            st.lds_q = st.lds_q[len(st.lds_q) - lg:] if lg > 0 else []
            if lg == 0:
                st.smem = set()
        if vm is not None:
            st.vm_q = st.vm_q[len(st.vm_q) - vm:] if vm > 0 else []

    def waitcnt(self, vm=None, lg=None):
        parts = []
        if vm is not None:
            parts.append("vmcnt(%d)" % vm)
        if lg is not None:
            parts.append("lgkmcnt(%d)" % lg)
        self.lines.append("    s_waitcnt " + " ".join(parts))
        self.st.t += 1
        if lg is not None and lg < len(self.st.lds_q) + (1 if lg == 0 else 0):
            self._apply_wait(lg=lg)
        if vm is not None and vm < len(self.st.vm_q):
            self._apply_wait(vm=vm)

    def nop(self, n):
        while n > 0:
            k = min(n, 16)
            self.lines.append("    s_nop %d" % (k - 1))
            self.st.t += k
            n -= k

    def __call__(self, text):
        for line in text.strip().split("\n"):
            line = line.strip()
            if not line or line.startswith(";"):
                if line:
                    self.lines.append("    " + line)
                continue
            self.emit(line)

    def emit(self, text):
        ins = Inst(text)
        st = self.st
        if ins.op == "s_nop":
            self.nop(int(text.split()[1]) + 1)
            return
        if ins.op == "s_waitcnt":
            m1 = re.search(r"vmcnt\((\d+)\)", text)
            m2 = re.search(r"lgkmcnt\((\d+)\)", text)
            self.waitcnt(vm=int(m1.group(1)) if m1 else None, lg=int(m2.group(1)) if m2 else None)
            return
        lg, vm, sm = self._waits(ins)
        if sm:
            lg = 0
        if lg is not None and lg >= 15 and not sm:
            lg = None if lg > 15 else lg
        if lg is not None or vm is not None:
            self.waitcnt(vm=vm, lg=lg)
        need = self._need(ins)
        if need > 0:
            self.nops_inserted += need
            self.nop(need)
        self.lines.append("    " + text)
        self.stats[ins.kind] = self.stats.get(ins.kind, 0) + 1
        for r in ins.dst:
            st.last_w[r] = (st.t, ins.kind, ins.passes)
            st.mfma_c_read.pop(r, None) if ins.kind != "mfma" else None
        if ins.kind == "mfma":
            st.mfma_D = getattr(st, "mfma_D", {})
            for r in ins.dst:
                st.mfma_D[r] = tuple(ins.dst)
            for r in ins.srcC:
                st.mfma_c_read[r] = (st.t, ins.passes)
        if ins.kind == "vstore" and ("x4" in ins.op or "x3" in ins.op):
            for r in ins.src:
                if r[0] == "v":
                    st.store_data[r] = st.t
        if ins.kind in ("dsread", "dswrite"):
            st.lds_q.append(set(ins.dst))
            if len(st.lds_q) > 15:
                st.lds_q = st.lds_q[-15:]
        if ins.kind in ("vload", "vstore", "dma"):
            st.vm_q.append(set(ins.dst))
        if ins.kind == "smem":
            st.smem |= set(ins.dst)
        st.t += 1

    def drain(self):
        self.waitcnt(lg=0)
        st = self.st
        need = 0
        for r, (tp, kp, pp) in st.last_w.items():
            n = {4: 8, 8: 12}.get(pp, 5) if kp == "mfma" else (5 if kp in ("valu", "trans", "permlane", "readlane") else 1)
            need = max(need, n - (st.t - tp - 1))
        for r, (tp, pp) in st.mfma_c_read.items():
            need = max(need, {4: 3, 8: 7}[pp] - (st.t - tp - 1))
        if need > 0:
            self.nop(need)

    def text(self):
        return "\n".join(self.lines) + "\n"


def _dst_prev(self, r, st):
    return getattr(st, "mfma_D", {}).get(r, ())


Inst.dst_prev = _dst_prev
```

```python
import math
import struct
import sys

from emit import Emitter

NAME = "standalone__window_attn_swin_v2__vision"


def f2u(x):
    return struct.unpack("<I", struct.pack("<f", x))[0]


def hx(x):
    return "0x%08x" % (x & 0xFFFFFFFF)


L2E = math.log2(math.e)

WST = 0
WO = 55296
TB = 73728
XB = 77824
OB1 = 126976
LDS_TOTAL = 151552
XBYTES = 9633792

vL = 1
vXA0, vXA1 = 2, 3
vOW4, vOW2, vOR = 4, 5, 6
vWOA = 7
vST0, vST1 = 8, 9
vCV = 10
vT0, vT1, vT2, vT3, vT4 = 11, 12, 13, 14, 15
WQ, WK, WV = 16, 40, 64
BI = 88
QF, KF, VF = 136, 152, 168
ACC = 184
AQ, AK, AV = 184, 200, 216
XF = 232

sX, sW, sWO, sOUT = 8, 12, 16, 20
sLS, sW1, sW2, sCO = 24, 28, 32, 36
sKA = 40
sOUTP = 56
sW8, sGRP, sH = 58, 59, 60
sWIN1, sWIN2, sB1, sB2, sFX1, sFX2, sFY1, sFY2, sHAS2 = 61, 62, 63, 64, 65, 66, 67, 68, 69
sTAU, sFAST, sRND = 70, 71, 72
sA, sB, sC, sD = 73, 74, 75, 78
sEXV = 76
sCFX, sCFY, sPREV = 79, 80, 81
sC96, sEPS = 82, 83
sDBG = 84
sT0 = 88


def v(n, k=1):
    return "v%d" % n if k == 1 else "v[%d:%d]" % (n, n + k - 1)


def s(n, k=1):
    return "s%d" % n if k == 1 else "s[%d:%d]" % (n, n + k - 1)


def build(opts):
    e = Emitter()
    DBG = opts.get("dbg")
    NTX = " nt" if opts.get("ntx", True) else ""
    NTS = " nt" if opts.get("nts", False) else ""
    slow_blocks = []

    def srd(dst, ptr, nbytes):
        e(f"s_mov_b32 {s(dst)}, {s(ptr)}")
        e(f"s_and_b32 {s(dst+1)}, {s(ptr+1)}, 0xffff")
        e(f"s_mov_b32 {s(dst+2)}, {nbytes}")
        e(f"s_mov_b32 {s(dst+3)}, 0x00020000")

    dump_slot = [0]

    def dump(tag, reg, n, cond_round=None):
        if not DBG or tag not in DBG.split(","):
            return
        slot = dump_slot[0]
        dump_slot[0] += 1
        e.drain()
        e(f"s_load_dwordx2 {s(sDBG,2)}, s[0:1], 88")
        e.waitcnt(lg=0)
        e(f"s_and_b32 {s(sDBG+1)}, {s(sDBG+1)}, 0xffff")
        e(f"s_mov_b32 {s(sDBG+2)}, 0x10000000")
        e(f"s_mov_b32 {s(sDBG+3)}, 0x00020000")
        e(f"s_lshl_b32 {s(92)}, s2, 3")
        e(f"s_add_u32 {s(92)}, {s(92)}, {s(sW8)}")
        e(f"s_lshl_b32 {s(92)}, {s(92)}, 13")
        e(f"s_add_u32 {s(92)}, {s(92)}, {slot<<25}")
        e(f"s_lshl_b32 {s(93)}, {s(sRND)}, 24")
        e(f"s_add_u32 {s(92)}, {s(92)}, {s(93)}")
        e(f"v_lshlrev_b32 {v(vT4)}, 2, {v(vL)}")
        for r in range(n):
            e(f"buffer_store_dword {v(reg+r)}, {v(vT4)}, {s(sDBG,4)}, {s(92)} offen offset:{(r%16)*256}")
            if r == 15:
                e(f"s_add_u32 {s(92)}, {s(92)}, 4096")
        e.waitcnt(vm=0)
        print("dump slot", slot, tag, reg, n)

    e("s_cmp_ge_u32 s2, 256")
    e("s_cbranch_scc1 L_end")
    e(f"s_load_dwordx16 {s(sKA,16)}, s[0:1], 0")
    e(f"s_load_dwordx2 {s(sOUTP,2)}, s[0:1], 72")
    if opts.get("timing"):
        e(f"s_load_dwordx2 {s(sDBG,2)}, s[0:1], 88")
    e(f"v_lshrrev_b32 {v(vT0)}, 6, v0")
    e(f"v_and_b32 {v(vL)}, 63, v0")
    e(f"v_readfirstlane_b32 {s(sW8)}, {v(vT0)}")
    e(f"s_mov_b32 {s(sRND)}, 0")
    e(f"s_lshr_b32 {s(sGRP)}, {s(sW8)}, 2")
    e(f"s_and_b32 {s(sH)}, {s(sW8)}, 3")
    if opts.get("timing"):
        e(f"s_memrealtime {s(sT0,2)}")

    def window(sWIN, sBASE, sFX, sFY):
        e(f"s_mul_hi_u32 {s(sA)}, {s(sWIN)}, 153391690")
        e(f"s_mul_i32 {s(sB)}, {s(sA)}, 28")
        e(f"s_sub_u32 {s(sB)}, {s(sWIN)}, {s(sB)}")
        e(f"s_mul_i32 {s(sC)}, {s(sA)}, 344064")
        e(f"s_mul_i32 {s(sD)}, {s(sB)}, 1536")
        e(f"s_add_u32 {s(sBASE)}, {s(sC)}, {s(sD)}")
        e(f"s_add_u32 {s(sBASE)}, {s(sBASE)}, 172800")
        e(f"s_cmp_eq_u32 {s(sB)}, 27")
        e(f"s_cselect_b32 {s(sFX)}, -1, 0")
        e(f"s_cmp_eq_u32 {s(sA)}, 27")
        e(f"s_cselect_b32 {s(sFY)}, 1, 0")

    e(f"s_lshl_b32 {s(sA)}, {s(sGRP)}, 8")
    e(f"s_add_u32 {s(sWIN1)}, s2, {s(sA)}")
    e(f"s_add_u32 {s(sWIN2)}, {s(sWIN1)}, 512")
    e(f"s_cmp_lt_u32 {s(sWIN2)}, 784")
    e(f"s_cselect_b32 {s(sHAS2)}, 1, 0")
    window(sWIN1, sB1, sFX1, sFY1)
    window(sWIN2, sB2, sFX2, sFY2)

    N16, G4, N32, HI = 190, 191, 192, 193
    e(f"v_and_b32 {v(N16)}, 15, {v(vL)}")
    e(f"v_lshrrev_b32 {v(G4)}, 4, {v(vL)}")
    e(f"v_and_b32 {v(N32)}, 31, {v(vL)}")
    e(f"v_lshrrev_b32 {v(HI)}, 5, {v(vL)}")
    L16 = 194
    e(f"v_lshlrev_b32 {v(L16)}, 4, {v(vL)}")

    oCO0, oCO1, oW1, oW2, oLS = 195, 196, 197, 198, 199
    e(f"v_cmp_eq_u32 vcc, 0, {v(G4)}")
    e(f"v_mov_b32 {v(vT1)}, 0x7ff00000")
    e(f"s_lshl_b32 {s(sA)}, {s(sW8)}, 4")
    e(f"v_add_u32 {v(vT2)}, {s(sA)}, {v(N16)}")
    e(f"v_lshlrev_b32 {v(vT3)}, 2, {v(vT2)}")
    e(f"v_cndmask_b32 {v(oCO0)}, {v(vT1)}, {v(vT3)}, vcc")
    e(f"v_add_u32 {v(vT3)}, 512, {v(vT3)}")
    e(f"v_cndmask_b32 {v(oCO1)}, {v(vT1)}, {v(vT3)}, vcc")
    e(f"v_lshlrev_b32 {v(vT3)}, 1, {v(N16)}")
    e(f"v_cndmask_b32 {v(oW1)}, {v(vT1)}, {v(vT3)}, vcc")
    TW = 200
    e(f"v_lshlrev_b32 {v(TW)}, 10, {v(G4)}")
    e(f"v_lshl_add_u32 {v(TW)}, {v(vT2)}, 2, {v(TW)}")
    e(f"v_add_u32 {v(TW)}, {TB}, {v(TW)}")
    e(f"v_lshrrev_b32 {v(vT3)}, 2, {v(N16)}")
    e(f"v_lshlrev_b32 {v(vT3)}, 1, {v(vT3)}")
    e(f"v_lshl_add_u32 {v(oW2)}, {v(G4)}, 5, {v(vT3)}")
    e(f"v_lshlrev_b32 {v(oLS)}, 1, {v(G4)}")
    B1a, B1b, A1, A2, B2, D1, D2, LSV = 204, 208, 212, 216, 220, 224, 228, 201
    for r in list(range(B1a, B1a + 4)) + list(range(B1b, B1b + 4)) + list(range(A1, A1 + 4)) + list(range(A2, A2 + 4)) + [B2 + 2, B2 + 3]:
        e(f"v_mov_b32 {v(r)}, 0")

    e("s_waitcnt lgkmcnt(0)")
    srd(sX, sKA + 0, XBYTES)
    srd(sW, sKA + 2, 55296)
    srd(sWO, sKA + 4, 18432)
    srd(sLS, sKA + 6, 8)
    srd(sW1, sKA + 8, 64)
    srd(sW2, sKA + 10, 128)
    srd(sCO, sKA + 12, 900)
    srd(sOUT, sOUTP, XBYTES)
    e(f"buffer_load_dword {v(B1a)}, {v(oCO0)}, {s(sCO,4)}, 0 offen")
    e(f"buffer_load_dword {v(B1b)}, {v(oCO1)}, {s(sCO,4)}, 0 offen")
    H0, H1, H2 = 236, 237, 238
    e(f"buffer_load_ushort {v(A1)}, {v(oW1)}, {s(sW1,4)}, 0 offen")
    e(f"buffer_load_ushort {v(H0)}, {v(oW1)}, {s(sW1,4)}, 0 offen offset:32")
    e(f"buffer_load_ushort {v(A2)}, {v(oW2)}, {s(sW2,4)}, 0 offen")
    e(f"buffer_load_ushort {v(H1)}, {v(oW2)}, {s(sW2,4)}, 0 offen offset:8")
    e(f"buffer_load_ushort {v(A2+1)}, {v(oW2)}, {s(sW2,4)}, 0 offen offset:16")
    e(f"buffer_load_ushort {v(H2)}, {v(oW2)}, {s(sW2,4)}, 0 offen offset:24")
    e(f"buffer_load_ushort {v(LSV)}, {v(oLS)}, {s(sLS,4)}, 0 offen")
    e(f"s_lshr_b32 {s(sD)}, s2, 3")
    e(f"s_add_u32 {s(sD)}, {s(sD)}, {s(sW8)}")
    for i in range(7):
        e(f"s_add_u32 {s(sA)}, {s(sD)}, {8*i}")
        e(f"s_cmp_ge_u32 {s(sA)}, 54")
        e(f"s_cselect_b32 {s(sB)}, 54, 0")
        e(f"s_sub_u32 {s(sA)}, {s(sA)}, {s(sB)}")
        e(f"s_lshl_b32 {s(sA)}, {s(sA)}, 10")
        e(f"s_add_u32 m0, {s(sA)}, {WST}")
        e(f"buffer_load_dwordx4 {v(L16)}, {s(sW,4)}, {s(sA)} offen lds")
    XO, XC = 184, 187
    e(f"s_mul_i32 {s(sA)}, {s(sH)}, 48")
    for i in range(3):
        e(f"v_lshrrev_b32 {v(vT0)}, 2, {v(vL)}")
        e(f"v_add_u32 {v(vT0)}, {s(sA)}, {v(vT0)}")
        if i:
            e(f"v_add_u32 {v(vT0)}, {16*i}, {v(vT0)}")
        e(f"v_mul_u32_u24 {v(vT1)}, 171, {v(vT0)}")
        e(f"v_lshrrev_b32 {v(vT1)}, 9, {v(vT1)}")
        e(f"v_mul_u32_u24 {v(vT2)}, 3, {v(vT1)}")
        e(f"v_sub_u32 {v(vT2)}, {v(vT0)}, {v(vT2)}")
        e(f"v_bfe_u32 {v(vT3)}, {v(vT1)}, 2, 2")
        e(f"v_and_b32 {v(vT4)}, 3, {v(vL)}")
        e(f"v_xor_b32 {v(vT4)}, {v(vT4)}, {v(vT3)}")
        e(f"v_lshl_add_u32 {v(vT4)}, {v(vT2)}, 2, {v(vT4)}")
        e(f"v_lshlrev_b32 {v(vT4)}, 4, {v(vT4)}")
        e(f"v_and_b32 {v(vT3)}, 1, {v(vT3)}")
        e(f"v_mul_u32_u24 {v(XC+i)}, 43008, {v(vT3)}")
        e(f"v_lshrrev_b32 {v(vT2)}, 3, {v(vT1)}")
        e(f"v_mul_u32_u24 {v(vT2)}, 43008, {v(vT2)}")
        e(f"v_and_b32 {v(vT1)}, 7, {v(vT1)}")
        e(f"v_mul_u32_u24 {v(vT1)}, 192, {v(vT1)}")
        e(f"v_add3_u32 {v(XO+i)}, {v(vT1)}, {v(vT2)}, {v(vT4)}")

    def wrap_addr(dst, off, cw, sBASE, sFX):
        e(f"v_add_u32 {v(dst)}, {s(sBASE)}, {v(off)}")
        e(f"v_and_b32 {v(vT0)}, {s(sFX)}, {v(cw)}")
        e(f"v_sub_u32 {v(dst)}, {v(dst)}, {v(vT0)}")
        e(f"v_subrev_u32 {v(vT0)}, {XBYTES}, {v(dst)}")
        e(f"v_min_u32 {v(dst)}, {v(dst)}, {v(vT0)}")

    def x_dma(rnd, sBASE, sFX):
        e(f"s_mul_i32 {s(sA)}, {s(sGRP)}, 24576")
        e(f"s_mul_i32 {s(sB)}, {s(sH)}, 3072")
        e(f"s_add_u32 {s(sA)}, {s(sA)}, {s(sB)}")
        for i in range(3):
            wrap_addr(vT1, XO + i, XC + i, sBASE, sFX)
            e(f"s_add_u32 m0, {s(sA)}, {XB + rnd*12288 + 1024*i}")
            e(f"buffer_load_dwordx4 {v(vT1)}, {s(sX,4)}, 0 offen{NTX} lds")

    x_dma(0, sB1, sFX1)
    e(f"s_lshr_b32 {s(sD)}, s2, 3")
    e(f"s_and_b32 {s(sD)}, {s(sD)}, 7")
    e(f"s_add_u32 {s(sD)}, {s(sD)}, {s(sW8)}")
    for i in range(3):
        e(f"s_add_u32 {s(sA)}, {s(sD)}, {8*i}")
        e(f"s_cmp_ge_u32 {s(sA)}, 18")
        e(f"s_cselect_b32 {s(sB)}, 18, 0")
        e(f"s_sub_u32 {s(sA)}, {s(sA)}, {s(sB)}")
        e(f"s_lshl_b32 {s(sA)}, {s(sA)}, 10")
        e(f"s_add_u32 m0, {s(sA)}, {WO}")
        e(f"buffer_load_dwordx4 {v(L16)}, {s(sWO,4)}, {s(sA)} offen lds")

    e(f"v_bfe_u32 {v(vT0)}, {v(N32)}, 2, 2")
    e(f"v_xor_b32 {v(vT0)}, {v(vT0)}, {v(HI)}")
    e(f"v_lshlrev_b32 {v(vT0)}, 4, {v(vT0)}")
    e(f"v_mul_u32_u24 {v(vT1)}, 192, {v(N32)}")
    e(f"v_add_u32 {v(vT0)}, {v(vT0)}, {v(vT1)}")
    e(f"s_mul_i32 {s(sA)}, {s(sGRP)}, 24576")
    e(f"s_add_u32 {s(sA)}, {s(sA)}, {XB}")
    e(f"v_xor_b32 {v(vT1)}, 32, {v(vT0)}")
    e(f"v_add_u32 {v(vXA0)}, {s(sA)}, {v(vT0)}")
    e(f"v_add_u32 {v(vXA1)}, {s(sA)}, {v(vT1)}")
    e(f"s_mul_i32 {s(sA)}, {s(sGRP)}, 12288")
    e(f"s_add_u32 {s(sA)}, {s(sA)}, {OB1}")
    e(f"s_mul_i32 {s(sB)}, {s(sH)}, 3072")
    e(f"s_add_u32 {s(sB)}, {s(sB)}, {s(sA)}")
    e(f"v_mul_u32_u24 {v(vT0)}, 48, {v(N32)}")
    e(f"v_add_u32 {v(vT0)}, {s(sB)}, {v(vT0)}")
    e(f"v_lshl_add_u32 {v(vOW4)}, {v(HI)}, 4, {v(vT0)}")
    e(f"v_lshl_add_u32 {v(vOW2)}, {v(HI)}, 3, {v(vT0)}")
    e(f"v_add_u32 {v(vOW2)}, 32, {v(vOW2)}")
    e(f"s_mul_i32 {s(sB)}, {s(sH)}, 768")
    e(f"s_add_u32 {s(sB)}, {s(sB)}, {s(sA)}")
    e(f"v_mul_u32_u24 {v(vT0)}, 48, {v(N16)}")
    e(f"v_mul_u32_u24 {v(vT1)}, 3072, {v(G4)}")
    e(f"v_add3_u32 {v(vOR)}, {v(vT0)}, {v(vT1)}, {s(sB)}")
    e(f"v_lshrrev_b32 {v(vT0)}, 2, {v(N16)}")
    e(f"v_mad_u32_u24 {v(vT0)}, {v(G4)}, 24, {v(vT0)}")
    e(f"v_mul_u32_u24 {v(vT0)}, 192, {v(vT0)}")
    e(f"v_and_b32 {v(vT1)}, 3, {v(vL)}")
    e(f"v_lshl_add_u32 {v(vT0)}, {v(vT1)}, 4, {v(vT0)}")
    e(f"v_add_u32 {v(vWOA)}, {WO}, {v(vT0)}")
    SO, SC = 202, 203
    e(f"s_mul_i32 {s(sA)}, {s(sH)}, {2*43008}")
    e(f"v_lshrrev_b32 {v(vT0)}, 3, {v(N16)}")
    e(f"v_mul_u32_u24 {v(vT0)}, 43008, {v(vT0)}")
    e(f"v_and_b32 {v(vT1)}, 7, {v(N16)}")
    e(f"v_mul_u32_u24 {v(vT1)}, 192, {v(vT1)}")
    e(f"v_add3_u32 {v(vT0)}, {v(vT0)}, {v(vT1)}, {s(sA)}")
    e(f"v_lshl_add_u32 {v(SO)}, {v(G4)}, 4, {v(vT0)}")
    e(f"v_bfe_u32 {v(vT1)}, {v(N16)}, 2, 1")
    e(f"v_mul_u32_u24 {v(SC)}, 43008, {v(vT1)}")
    wrap_addr(vST0, SO, SC, sB1, sFX1)
    wrap_addr(vST1, SO, SC, sB2, sFX2)

    e.waitcnt(vm=13)
    e.st.vm_q = [set() for _ in range(13)]
    e(f"v_lshl_or_b32 {v(A1)}, {v(H0)}, 16, {v(A1)}")
    e(f"v_lshl_or_b32 {v(A2)}, {v(H1)}, 16, {v(A2)}")
    e(f"v_lshl_or_b32 {v(A2+1)}, {v(H2)}, 16, {v(A2+1)}")
    TAU, KH = 190, 191
    TAU, KH = 185 + 20, 185 + 21
    TAU, KH = 232, 233
    e(f"v_lshlrev_b32 {v(TAU)}, 16, {v(LSV)}")
    e(f"v_max_f32 {v(TAU)}, 0xc2c80000, {v(TAU)}")
    e(f"v_min_f32 {v(TAU)}, 0x40930000, {v(TAU)}")
    e(f"v_mul_f32 {v(TAU)}, {hx(f2u(L2E))}, {v(TAU)}")
    e(f"v_exp_f32 {v(TAU)}, {v(TAU)}")
    e(f"v_cvt_pk_bf16_f32 {v(TAU)}, {v(TAU)}, {v(TAU)}")
    e(f"v_lshlrev_b32 {v(TAU)}, 16, {v(TAU)}")
    e(f"v_mul_f32 {v(KH)}, {hx(f2u(-1.004*L2E))}, {v(TAU)}")
    e(f"v_add_f32 {v(KH)}, {hx(f2u(60.0-16.0*L2E))}, {v(KH)}")
    e(f"s_lshl_b32 {s(sA)}, {s(sH)}, 4")
    e(f"v_readlane_b32 {s(sTAU)}, {v(TAU)}, {s(sA)}")
    e(f"s_mov_b32 {s(sC)}, {hx(f2u(16.0*L2E))}")
    for t, B1 in enumerate((B1a, B1b)):
        e(f"v_mfma_f32_16x16x32_bf16 {v(D1,4)}, {v(A1,4)}, {v(B1,4)}, 0")
        for r in range(4):
            e(f"v_max_f32 {v(D1+r)}, 0, {v(D1+r)}")
        e(f"v_cvt_pk_bf16_f32 {v(B2)}, {v(D1)}, {v(D1+1)}")
        e(f"v_cvt_pk_bf16_f32 {v(B2+1)}, {v(D1+2)}, {v(D1+3)}")
        e(f"v_mfma_f32_16x16x32_bf16 {v(D2,4)}, {v(A2,4)}, {v(B2,4)}, 0")
        e(f"v_cvt_pk_bf16_f32 {v(vT0)}, {v(D2)}, {v(D2)}")
        e(f"v_lshlrev_b32 {v(vT0)}, 16, {v(vT0)}")
        e(f"v_mul_f32 {v(vT0)}, {hx(f2u(-L2E))}, {v(vT0)}")
        e(f"v_exp_f32 {v(vT0)}, {v(vT0)}")
        e(f"v_add_f32 {v(vT0)}, 1.0, {v(vT0)}")
        e(f"v_rcp_f32 {v(vT0)}, {v(vT0)}")
        e(f"v_cvt_pk_bf16_f32 {v(vT0)}, {v(vT0)}, {v(vT0)}")
        e(f"v_lshlrev_b32 {v(vT0)}, 16, {v(vT0)}")
        e(f"v_fma_f32 {v(vT0)}, {v(vT0)}, {s(sC)}, {v(KH)}")
        e(f"ds_write_b32 {v(TW)}, {v(vT0)} offset:{512*t}")
    e(f"v_mov_b32 {v(vT0)}, {s(sTAU)}")
    e(f"v_mul_f32 {v(vT0)}, {hx(f2u(L2E))}, {v(vT0)}")
    e(f"v_cmp_gt_u32 vcc, 32, {v(vL)}")
    e(f"v_cndmask_b32 {v(vCV)}, 1.0, {v(vT0)}, vcc")
    e(f"s_cmp_le_u32 {s(sTAU)}, {hx(f2u(47.0))}")
    e(f"s_cselect_b32 {s(sFAST)}, 1, 0")
    if opts.get("force_slow"):
        e(f"s_mov_b32 {s(sFAST)}, 0")
    e(f"s_mov_b32 {s(sEXV)}, 0x00ffffff")
    e(f"s_mov_b32 {s(sEXV+1)}, 0x00ffffff")
    e(f"s_mov_b32 {s(sC96)}, {hx(f2u(1.0/96.0))}")
    e(f"s_mov_b32 {s(sEPS)}, {hx(f2u(1e-5))}")
    for r in range(16):
        e(f"v_mov_b32 {v(VF+r)}, 0x3f803f80")
    for t in range(2):
        for r in (6, 7):
            e(f"v_mov_b32 {v(QF+8*t+r)}, 0")
            e(f"v_mov_b32 {v(KF+8*t+r)}, 0")
    WA, BA = 234, 235
    e(f"v_lshrrev_b32 {v(vT0)}, 2, {v(N16)}")
    e(f"v_lshl_add_u32 {v(vT0)}, {v(HI)}, 3, {v(vT0)}")
    e(f"v_mul_u32_u24 {v(vT0)}, 576, {v(vT0)}")
    e(f"v_and_b32 {v(vT1)}, 1, {v(G4)}")
    e(f"v_lshlrev_b32 {v(vT1)}, 5, {v(vT1)}")
    e(f"v_and_b32 {v(vT2)}, 3, {v(vL)}")
    e(f"v_lshl_add_u32 {v(vT1)}, {v(vT2)}, 3, {v(vT1)}")
    e(f"s_mul_i32 {s(sA)}, {s(sH)}, 48")
    e(f"v_add3_u32 {v(WA)}, {v(vT0)}, {v(vT1)}, {s(sA)}")
    if WST:
        e(f"v_add_u32 {v(WA)}, {WST}, {v(WA)}")
    e(f"v_lshrrev_b32 {v(vT0)}, 3, {v(N32)}")
    e(f"v_mul_u32_u24 {v(vT0)}, 15, {v(vT0)}")
    e(f"v_and_b32 {v(vT1)}, 7, {v(N32)}")
    e(f"v_add_u32 {v(vT0)}, {v(vT0)}, {v(vT1)}")
    e(f"v_lshlrev_b32 {v(vT1)}, 2, {v(HI)}")
    e(f"v_sub_u32 {v(vT0)}, {v(vT0)}, {v(vT1)}")
    e(f"v_add_u32 {v(vT0)}, {7*15+7-108}, {v(vT0)}")
    e(f"s_lshl_b32 {s(sA)}, {s(sH)}, 10")
    e(f"s_add_u32 {s(sA)}, {s(sA)}, {TB}")
    e(f"v_lshl_add_u32 {v(BA)}, {v(vT0)}, 2, {s(sA)}")
    e(f"v_bfe_u32 {v(vT0)}, {v(N32)}, 2, 1")
    e(f"v_cmp_eq_u32 vcc, 1, {v(vT0)}")
    e(f"v_mov_b32 {v(vT1)}, 0x0000ffff")
    e(f"v_mov_b32 {v(vT2)}, 0xffff0000")
    e(f"v_cndmask_b32 v0, {v(vT1)}, {v(vT2)}, vcc")

    if opts.get("timing"):
        e(f"s_memrealtime {s(sT0+2,2)}")
    e.waitcnt(vm=3, lg=0)
    e("s_barrier")
    if opts.get("timing"):
        e(f"s_memrealtime {s(sT0+4,2)}")
    e(f"s_cmp_eq_u32 {s(sHAS2)}, 0")
    e("s_cbranch_scc1 L_nox2")
    st0 = e.st.copy()
    x_dma(1, sB2, sFX2)
    e.label("L_nox2")
    e.st.vm_q = [set() for _ in range(6)]

    for P, base in enumerate((WQ, WK, WV)):
        for sidx in range(6):
            for z in range(2):
                off = (16 * sidx + 4 * z) * 576 + P * 192
                e(f"ds_read_b64_tr_b16 {v(base+4*sidx+2*z,2)}, {v(WA)} offset:{off}")
    for dl in (-1, 0, 1):
        for a in range(4):
            for b in (0, 2):
                o0 = (4 * dl - a) * 15 - b + 108
                e(f"ds_read2_b32 {v(BI+16*(dl+1)+4*a+b,2)}, {v(BA)} offset0:{o0} offset1:{o0-1}")
    e.waitcnt(lg=0)
    e(f"s_mov_b32 {s(sRND)}, 0")
    e(f"s_mov_b32 {s(sPREV)}, 0")
    e(f"s_mov_b32 {s(sCFX)}, {s(sFX1)}")
    e(f"s_mov_b32 {s(sCFY)}, {s(sFY1)}")
    if opts.get("timing"):
        e(f"s_memrealtime {s(sT0+6,2)}")
        e.waitcnt(lg=0)

    dump("w", WQ, 32)
    dump("w2", WQ+32, 32)
    dump("bias", BI, 32)
    dump("bias2", BI+32, 16)
    e.label("L_round")
    e(f"s_or_b32 {s(sA)}, {s(sCFX)}, {s(sCFY)}")
    e(f"s_or_b32 {s(sB)}, {s(sA)}, {s(sPREV)}")
    e(f"s_mov_b32 {s(sPREV)}, {s(sA)}")
    e(f"s_cmp_eq_u32 {s(sB)}, 0")
    e("s_cbranch_scc1 L_nomask")
    e(f"v_mov_b32 {v(vT0)}, 0x0000ffff")
    e(f"v_bfi_b32 {v(vT0)}, {s(sCFX)}, v0, {v(vT0)}")
    e(f"v_lshrrev_b32 {v(vT1)}, 5, {v(vL)}")
    for t in range(2):
        if t == 0:
            e(f"v_cmp_eq_u32 vcc, 0, {v(vT1)}")
        else:
            e(f"v_cmp_eq_u32 vcc, {s(sCFY)}, {v(vT1)}")
        e(f"v_cndmask_b32 {v(vT2)}, 0, {v(vT0)}, vcc")
        e(f"v_and_b32 {v(QF+8*t+6)}, 0x3f803f80, {v(vT2)}")
        e(f"v_mov_b32 {v(QF+8*t+7)}, {v(QF+8*t+6)}")
        e(f"v_not_b32 {v(vT2)}, {v(vT2)}")
        e(f"v_and_b32 {v(KF+8*t+6)}, 0xc310c310, {v(vT2)}")
        e(f"v_and_b32 {v(KF+8*t+7)}, 0xbe8abe8a, {v(vT2)}")
    e.nop(2)
    e.label("L_nomask")

    MF32 = "v_mfma_f32_32x32x16_bf16"
    MF16 = "v_mfma_f32_16x16x32_bf16"

    def xreads(t):
        for sidx in range(6):
            a = vXA0 if sidx % 2 == 0 else vXA1
            e(f"ds_read_b128 {v(XF+4*sidx,4)}, {v(a)} offset:{t*6144 + 64*(sidx>>1)}")

    xreads(0)
    for t in range(2):
        for sidx in range(6):
            c = "0" if sidx == 0 else None
            e(f"{MF32} {v(AQ,16)}, {v(WQ+4*sidx,4)}, {v(XF+4*sidx,4)}, {c or v(AQ,16)}")
            e(f"{MF32} {v(AK,16)}, {v(WK+4*sidx,4)}, {v(XF+4*sidx,4)}, {c or v(AK,16)}")
        for sidx in range(6):
            c = "0" if sidx == 0 else None
            e(f"{MF32} {v(AV,16)}, {v(XF+4*sidx,4)}, {v(WV+4*sidx,4)}, {c or v(AV,16)}")
        if t == 0:
            xreads(1)
        e(f"v_fmaak_f32 {v(vT0)}, {v(AQ)}, {v(AQ)}, {hx(f2u(0.5e-12))}")
        e(f"v_fmaak_f32 {v(vT1)}, {v(AK)}, {v(AK)}, {hx(f2u(0.5e-12))}")
        for r in range(1, 12):
            e(f"v_fmac_f32 {v(vT0)}, {v(AQ+r)}, {v(AQ+r)}")
            e(f"v_fmac_f32 {v(vT1)}, {v(AK+r)}, {v(AK+r)}")
        e(f"v_permlane32_swap_b32 {v(vT0)}, {v(vT1)}")
        e(f"v_add_f32 {v(vT0)}, {v(vT0)}, {v(vT1)}")
        e(f"v_rsq_f32 {v(vT0)}, {v(vT0)}")
        e(f"v_mul_f32 {v(vT0)}, {v(vT0)}, {v(vCV)}")
        e(f"v_mov_b32 {v(vT1)}, {v(vT0)}")
        e(f"v_permlane32_swap_b32 {v(vT0)}, {v(vT1)}")
        for r in range(12):
            e(f"v_mul_f32 {v(AQ+r)}, {v(AQ+r)}, {v(vT0)}")
            e(f"v_mul_f32 {v(AK+r)}, {v(AK+r)}, {v(vT1)}")
        for r in range(6):
            e(f"v_cvt_pk_bf16_f32 {v(QF+8*t+r)}, {v(AQ+2*r)}, {v(AQ+2*r+1)}")
            e(f"v_cvt_pk_bf16_f32 {v(KF+8*t+r)}, {v(AK+2*r)}, {v(AK+2*r+1)}")
        e(f"s_mov_b64 exec, {s(sEXV,2)}")
        for r in range(8):
            e(f"v_cvt_pk_bf16_f32 {v(VF+8*t+r)}, {v(AV+2*r)}, {v(AV+2*r+1)}")
        e("s_mov_b64 exec, -1")

    dump("qk", QF, 32)
    dump("v", VF, 16)
    SR = {(0, 0): 184, (0, 1): 200, (1, 0): 216, (1, 1): 232}
    for tq in range(2):
        for tk in range(2):
            d = SR[(tq, tk)]
            e(f"{MF32} {v(d,16)}, {v(KF+8*tk,4)}, {v(QF+8*tq,4)}, {v(BI+16*(tq-tk+1),16)}")
            e(f"{MF32} {v(d,16)}, {v(KF+8*tk+4,4)}, {v(QF+8*tq+4,4)}, {v(d,16)}")
    dump("s0", 184, 32)
    dump("s1", 216, 32)
    for tq in range(2):
        sa, sb = SR[(tq, 0)], SR[(tq, 1)]
        lab = f"L_slow{tq}"
        e(f"s_cmp_eq_u32 {s(sFAST)}, 0")
        e(f"s_cbranch_scc1 {lab}")
        slow_blocks.append((lab, sa, sb, e.st.copy()))
        e.label(lab + "_ret")
        for r in range(16):
            e(f"v_exp_f32 {v(sa+r)}, {v(sa+r)}")
        for r in range(8):
            e(f"v_cvt_pk_bf16_f32 {v(sa+r)}, {v(sa+2*r)}, {v(sa+2*r+1)}")
        for r in range(16):
            e(f"v_exp_f32 {v(sb+r)}, {v(sb+r)}")
        for r in range(8):
            e(f"v_cvt_pk_bf16_f32 {v(sa+8+r)}, {v(sb+2*r)}, {v(sb+2*r+1)}")
        k = 0
        for tk in range(2):
            for vv in range(2):
                c = "0" if k == 0 else v(sb, 16)
                e(f"{MF32} {v(sb,16)}, {v(VF+8*tk+4*vv,4)}, {v(sa+8*tk+4*vv,4)}, {c}")
                k += 1
    for tq in range(2):
        o = SR[(tq, 1)]
        e(f"v_rcp_f32 {v(vT0)}, {v(o+12)}")
        for r in range(12):
            e(f"v_mul_f32 {v(o+r)}, {v(o+r)}, {v(vT0)}")
        for r in range(6):
            e(f"v_cvt_pk_bf16_f32 {v(o+r)}, {v(o+2*r)}, {v(o+2*r+1)}")
        e(f"ds_write_b128 {v(vOW4)}, {v(o,4)} offset:{tq*1536}")
        e(f"ds_write_b64 {v(vOW2)}, {v(o+4,2)} offset:{tq*1536}")

    dump("o0", 200, 16)
    dump("o1", 232, 16)
    e.waitcnt(vm=0, lg=0)
    e("s_barrier")

    OF = 232
    T = 184
    WB = [208, 212, 216, 220, 224, 228, 244, 248, 252]
    for sidx in range(3):
        e(f"ds_read_b128 {v(OF+4*sidx,4)}, {v(vOR)} offset:{16*sidx}")
    dA, dB = (0, 4, 16), (8, 12, 20)
    frs = [(sidx, j) for sidx in range(3) for j in range(6)]

    def wo_read(k):
        sidx, j = frs[k]
        i, jj = j >> 1, j & 1
        b = WB[k % len(WB)]
        e(f"ds_read_b64_tr_b16 {v(b,2)}, {v(vWOA)} offset:{dA[sidx]*192 + 64*i + 8*jj}")
        e(f"ds_read_b64_tr_b16 {v(b+2,2)}, {v(vWOA)} offset:{dB[sidx]*192 + 64*i + 8*jj}")

    PRE = 6
    for k in range(PRE):
        wo_read(k)
    for k in range(18):
        sidx, j = frs[k]
        c = "0" if sidx == 0 else v(T + 4 * j, 4)
        e(f"{MF16} {v(T+4*j,4)}, {v(WB[k%len(WB)],4)}, {v(OF+4*sidx,4)}, {c}")
        if k + PRE < 18:
            wo_read(k + PRE)
    dump("of", OF, 12)
    dump("t", T, 24)
    e(f"v_add_f32 {v(vT0)}, {v(T)}, {v(T+1)}")
    e(f"v_mul_f32 {v(vT1)}, {v(T)}, {v(T)}")
    e(f"v_fmac_f32 {v(vT1)}, {v(T+1)}, {v(T+1)}")
    for r in range(2, 24):
        e(f"v_add_f32 {v(vT0)}, {v(vT0)}, {v(T+r)}")
        e(f"v_fmac_f32 {v(vT1)}, {v(T+r)}, {v(T+r)}")
    e(f"v_permlane32_swap_b32 {v(vT0)}, {v(vT1)}")
    e(f"v_add_f32 {v(vT0)}, {v(vT0)}, {v(vT1)}")
    e(f"v_mov_b32 {v(vT1)}, {v(vT0)}")
    e(f"v_permlane16_swap_b32 {v(vT0)}, {v(vT1)}")
    e(f"v_add_f32 {v(vT0)}, {v(vT0)}, {v(vT1)}")
    e(f"v_mov_b32 {v(vT1)}, {v(vT0)}")
    e(f"v_permlane32_swap_b32 {v(vT0)}, {v(vT1)}")
    e(f"v_mul_f32 {v(vT0)}, {s(sC96)}, {v(vT0)}")
    e(f"v_fma_f32 {v(vT2)}, -{v(vT0)}, {v(vT0)}, {s(sEPS)}")
    e(f"v_fma_f32 {v(vT1)}, {v(vT1)}, {s(sC96)}, {v(vT2)}")
    e(f"v_rsq_f32 {v(vT1)}, {v(vT1)}")
    e(f"v_mul_f32 {v(vT0)}, -{v(vT0)}, {v(vT1)}")
    for r in range(24):
        e(f"v_fma_f32 {v(T+r)}, {v(T+r)}, {v(vT1)}, {v(vT0)}")
    P = 208
    for r in range(12):
        e(f"v_cvt_pk_bf16_f32 {v(P+r)}, {v(T+2*r)}, {v(T+2*r+1)}")
    for i in range(3):
        e(f"buffer_store_dwordx4 {v(P+4*i,4)}, {v(vST0)}, {s(sOUT,4)}, 0 offen offset:{64*i}{NTS}")

    e(f"s_cmp_lg_u32 {s(sRND)}, 0")
    e("s_cbranch_scc1 L_fin")
    e(f"s_cmp_eq_u32 {s(sHAS2)}, 0")
    e("s_cbranch_scc1 L_fin")
    e(f"s_mov_b32 {s(sRND)}, 1")
    e(f"s_mov_b32 {s(sCFX)}, {s(sFX2)}")
    e(f"s_mov_b32 {s(sCFY)}, {s(sFY2)}")
    e(f"v_add_u32 {v(vXA0)}, 12288, {v(vXA0)}")
    e(f"v_add_u32 {v(vXA1)}, 12288, {v(vXA1)}")
    e(f"s_mul_i32 {s(sA)}, {s(sGRP)}, 12288")
    e(f"s_add_u32 {s(sA)}, {s(sA)}, {hx(XB-OB1)}")
    e(f"v_add_u32 {v(vOW4)}, {s(sA)}, {v(vOW4)}")
    e(f"v_add_u32 {v(vOW2)}, {s(sA)}, {v(vOW2)}")
    e(f"v_add_u32 {v(vOR)}, {s(sA)}, {v(vOR)}")
    e(f"v_mov_b32 {v(vST0)}, {v(vST1)}")
    e.drain()
    e("s_branch L_round")
    e.label("L_fin")
    if opts.get("timing"):
        e(f"s_memrealtime {s(sT0+8,2)}")
        e.waitcnt(vm=0, lg=0)
        e(f"s_memrealtime {s(sT0+10,2)}")
        e(f"s_mov_b32 {s(sDBG+2)}, 0x1000000")
        e(f"s_and_b32 {s(sDBG+1)}, {s(sDBG+1)}, 0xffff")
        e(f"s_mov_b32 {s(sDBG+3)}, 0x00020000")
        e(f"s_lshl_b32 {s(sA)}, s2, 3")
        e(f"s_add_u32 {s(sA)}, {s(sA)}, {s(sW8)}")
        e(f"s_lshl_b32 {s(sA)}, {s(sA)}, 6")
        e.waitcnt(lg=0)
        for k in range(6):
            e(f"v_mov_b32 {v(16+k)}, {s(sT0+2*k)}")
        e(f"v_mov_b32 {v(vT0)}, {s(sA)}")
        e(f"s_mov_b64 exec, 1")
        e(f"buffer_store_dwordx4 {v(16,4)}, {v(vT0)}, {s(sDBG,4)}, 0 offen")
        e(f"buffer_store_dwordx2 {v(20,2)}, {v(vT0)}, {s(sDBG,4)}, 0 offen offset:16")
    e.label("L_end")
    e("s_endpgm")

    for lab, sa, sb, st in slow_blocks:
        e.st = st
        e.label(lab)
        e.nop(12)
        e(f"v_max3_f32 {v(vT0)}, {v(sa)}, {v(sa+1)}, {v(sa+2)}")
        regs = [sa + r for r in range(3, 16)] + [sb + r for r in range(16)]
        k = 0
        while k + 1 < len(regs):
            e(f"v_max3_f32 {v(vT0)}, {v(vT0)}, {v(regs[k])}, {v(regs[k+1])}")
            k += 2
        if k < len(regs):
            e(f"v_max_f32 {v(vT0)}, {v(vT0)}, {v(regs[k])}")
        e(f"v_mov_b32 {v(vT1)}, {v(vT0)}")
        e(f"v_permlane32_swap_b32 {v(vT0)}, {v(vT1)}")
        e(f"v_max_f32 {v(vT0)}, {v(vT0)}, {v(vT1)}")
        for r in [sa + r for r in range(16)] + [sb + r for r in range(16)]:
            e(f"v_sub_f32 {v(r)}, {v(r)}, {v(vT0)}")
        e.nop(4)
        e(f"s_branch {lab}_ret")

    head = open("cdna_kernels/%s.s.ref" % NAME).read()
    hdr = head[: head.index("; Override launch geometry")]
    out = hdr
    out += "; Generated by my own script (work/gen.py): 1 workgroup per CU, 8 waves = 2 window groups x 4 heads.\n"
    out += f"; @launch grid=(256,1,1) block=(512,1,1) lds={LDS_TOTAL}\n"
    out += '.amdgcn_target "amdgcn-amd-amdhsa--gfx950"\n.text\n'
    out += f".globl {NAME}_kernel\n.p2align 8\n.type {NAME}_kernel,@function\n{NAME}_kernel:\n"
    out += e.text()
    out += f""".section .rodata,"a"
.p2align 6
.amdhsa_kernel {NAME}_kernel
  .amdhsa_next_free_vgpr 256
  .amdhsa_next_free_sgpr 102
  .amdhsa_accum_offset 256
  .amdhsa_group_segment_fixed_size 0
  .amdhsa_kernarg_size 96
  .amdhsa_user_sgpr_count 2
  .amdhsa_user_sgpr_kernarg_segment_ptr 1
  .amdhsa_system_sgpr_workgroup_id_x 1
  .amdhsa_float_denorm_mode_32 3
.end_amdhsa_kernel
"""
    return out, e


if __name__ == "__main__":
    opts = {}
    outp = "cdna_kernels/%s.s" % NAME
    for a in sys.argv[1:]:
        if a.startswith("-o="):
            outp = a[3:]
        elif "=" in a:
            k, val = a.split("=")
            opts[k] = int(val) if val.lstrip("-").isdigit() else val
        else:
            opts[a] = True
    txt, e = build(opts)
    open(outp, "w").write(txt)
    print("wrote", outp, "stats", e.stats, "nops", e.nops_inserted)
```
